```python
import torch

def _softmax(x, axis=-1):
    return torch.softmax(x, dim=axis)

def _gelu(x):
    return torch.nn.functional.gelu(x, approximate='tanh')

def _silu(x):
    return torch.nn.functional.silu(x)

def _sigmoid(x):
    return torch.sigmoid(x)

def _layernorm(x, axis=-1, eps=1e-05):
    m = x.mean(dim=axis, keepdim=True)
    v = x.var(dim=axis, keepdim=True, unbiased=False)
    return (x - m) / torch.sqrt(v + eps)

def _scatter_add(tgt, idx, src, axis=0):
    return tgt.clone().index_add_(axis, idx, src)

def _segment_sum(src, seg, n):
    out = torch.zeros((n,) + src.shape[1:], dtype=src.dtype)
    return out.index_add_(0, seg, src)

def _pad(x, pw):
    flat = tuple((v for pair in reversed(pw) for v in pair))
    return torch.nn.functional.pad(x, flat)
kernel_name = 'adaLN_cond__ssm_conv_s4d__swiglu_ffn__prompt'

def setup_inputs():

    _w = lambda a: (lambda t: t.to(torch.bfloat16) if t.is_floating_point() else t)(torch.as_tensor(a))

    def _A_setup():
        Bsz, L, D, N = (1, 2048, 640, 192)
        return {'u': _w((lambda *s: torch.randn(*s, dtype=torch.bfloat16) * 0.05)(Bsz, L, D)), 'log_A_real': _w((lambda *s: torch.randn(*s, dtype=torch.bfloat16) * 3.2)(D, N) * 0.5), 'A_imag': _w((lambda *s: torch.randn(*s, dtype=torch.bfloat16) * 0.1)(D, N) * 3.14), 'C_real': _w((lambda *s: torch.randn(*s, dtype=torch.bfloat16) * 0.4)(D, N) / N ** 0.5), 'C_imag': _w((lambda *s: torch.randn(*s, dtype=torch.bfloat16) * 0.4)(D, N) / N ** 0.5), 'log_dt': _w((lambda *s: torch.randn(*s, dtype=torch.bfloat16) * 0.1)(D) * 0.5 - 4.0), 'D_skip': _w((lambda *s: torch.randn(*s, dtype=torch.bfloat16) * 0.2)(D))}
    _A_in = _A_setup()

    def _B_setup():
        B, S, D, F = (1, 2048, 640, 1536)
        return {'x': _w((lambda *s: torch.randn(*s, dtype=torch.bfloat16) * 0.05)(B, S, D)), 'w_gate': _w((lambda *s: torch.randn(*s, dtype=torch.bfloat16) * 0.05)(D, F)), 'w_up': _w((lambda *s: torch.randn(*s, dtype=torch.bfloat16) * 0.05)(D, F)), 'w_down': _w((lambda *s: torch.randn(*s, dtype=torch.bfloat16) * 0.05)(F, D))}
    _B_in = _B_setup()
    return {'A_u': _A_in['u'], 'A_log_A_real': _A_in['log_A_real'], 'A_A_imag': _A_in['A_imag'], 'A_C_real': _A_in['C_real'], 'A_C_imag': _A_in['C_imag'], 'A_log_dt': _A_in['log_dt'], 'A_D_skip': _A_in['D_skip'], 'B_x': _B_in['x'], 'B_w_gate': _B_in['w_gate'], 'B_w_up': _B_in['w_up'], 'B_w_down': _B_in['w_down'], 'c': _w((lambda *s: torch.randn(*s, dtype=torch.bfloat16) * 0.1)(1, 640) * 8.0), 'w_mod': _w((lambda *s: torch.randn(*s, dtype=torch.bfloat16) * 0.1)(640, 6 * 640) * 640 ** (-0.5) * 8.0)}

def reference(A_u, A_log_A_real, A_A_imag, A_C_real, A_C_imag, A_log_dt, A_D_skip, B_x, B_w_gate, B_w_up, B_w_down, c, w_mod):

    def _A_ref(u, log_A_real, A_imag, C_real, C_imag, log_dt, D_skip):
        L = u.shape[1]
        dt = torch.exp(log_dt)
        A = -torch.exp(log_A_real) + 1j * A_imag
        C = (C_real + 1j * C_imag) * dt[:, None]
        pos = (lambda x, dt: x.to(dt))(torch.arange(L), log_dt.dtype)
        P = torch.exp((A * dt[:, None])[:, :, None] * pos[None, None, :])
        K = 2.0 * torch.einsum('dn,dnl->dl', C, P).real
        L2 = 2 * L
        u_t = (lambda x, *d: x.permute(*d))(u, 0, 2, 1)
        Kf = (lambda x, *a, **k: torch.fft.rfft(x.float(), *a, **k))(K, L2)
        Uf = (lambda x, *a, **k: torch.fft.rfft(x.float(), *a, **k))(u_t, L2)
        y = (lambda x, *a, **k: torch.fft.irfft(x, *a, **k).to(torch.bfloat16))(Uf * Kf[None, :, :], L2)[:, :, :L]
        y = (lambda x, *d: x.permute(*d))(y, 0, 2, 1)
        return y + u * D_skip[None, None, :]

    def _B_ref(x, w_gate, w_up, w_down):
        g = _silu(x @ w_gate)
        u = x @ w_up
        return g * u @ w_down
    x = A_u
    mod = (_silu(c) @ w_mod).reshape(c.shape[0], 6, 1, -1)
    sa, ca, ga, sb, cb, gb = (mod[:, 0].clone(), mod[:, 1].clone(), mod[:, 2].clone(), mod[:, 3].clone(), mod[:, 4].clone(), mod[:, 5].clone())
    h = _layernorm(x, axis=-1) * (1 + ca) + sa
    x = x + ga * _A_ref(h, A_log_A_real, A_A_imag, A_C_real, A_C_imag, A_log_dt, A_D_skip)
    h = _layernorm(x, axis=-1) * (1 + cb) + sb
    x = x + gb * _B_ref(h, B_w_gate, B_w_up, B_w_down)
    return x
```

```python
import re
TRANS = ('v_exp_f32','v_log_f32','v_rcp_f32','v_rsq_f32','v_sqrt_f32','v_sin_f32','v_cos_f32','v_rcp_iflag_f32')
def regs(tok):
    tok = tok.strip()
    if tok.startswith('-'): tok = tok[1:]
    if tok.startswith('|'): tok = tok.strip('|')
    m = re.fullmatch(r'([vsa])\[(\d+):(\d+)\]', tok)
    if m: return {(m.group(1), i) for i in range(int(m.group(2)), int(m.group(3))+1)}
    m = re.fullmatch(r'([vsa])(\d+)', tok)
    if m: return {(m.group(1), int(m.group(2)))}
    if tok in ('vcc','vcc_lo','vcc_hi'): return {('s','vcc')}
    if tok in ('exec','exec_lo','exec_hi'): return {('s','exec')}
    if tok == 'm0': return {('s','m0')}
    return set()
class Ins:
    def __init__(s, line):
        s.line = line
        t = line.split(';')[0].strip()
        s.text = t
        s.label = t.endswith(':')
        s.directive = t.startswith('.')
        s.op = ''
        s.dst = set(); s.src = set(); s.ops = []
        if s.label or s.directive or not t: return
        p = t.split(None, 1)
        s.op = p[0]
        rest = p[1] if len(p) > 1 else ''
        parts = [x.strip() for x in rest.split(',')] if rest else []
        ops = []
        for k, x in enumerate(parts):
            w = x.split()
            if not w: continue
            ops.append(w[0])
        s.ops = ops
        s.mods = rest
        op = s.op
        s.mfma = op.startswith('v_mfma')
        s.valu = op.startswith('v_') and not s.mfma
        s.vmem = op.startswith(('buffer_','global_','flat_'))
        s.ds = op.startswith('ds_')
        s.salu = op.startswith('s_')
        s.trans = any(op.startswith(x) for x in TRANS)
        s.dot = op.startswith('v_dot')
        s.lds_dma = s.vmem and (' lds' in rest or 'load_lds' in op)
        R = [regs(o) for o in ops]
        s.R = R
        if s.mfma:
            s.dst = R[0]; s.A = R[1]; s.B = R[2]; s.C = R[3]; s.src = R[1]|R[2]|R[3]
            s.passes = 8 if '32x32' in op else 4
        elif s.valu:
            if op.startswith('v_cmp'):
                if op.endswith('_e32') or len(ops) == 2: s.dst = {('s','vcc')}; s.src = set().union(*R) if R else set()
                else: s.dst = R[0]; s.src = set().union(*R[1:])
            elif op.startswith(('v_add_co','v_sub_co','v_addc_co','v_subb_co','v_subrev_co')):
                s.dst = R[0]|R[1]; s.src = set().union(*R[2:])
            elif op.startswith('v_permlane') and 'swap' in op:
                s.dst = R[0]|R[1]; s.src = R[0]|R[1]
            else:
                s.dst = R[0]; s.src = set().union(*R[1:]) if len(R) > 1 else set()
                if op.startswith('v_cndmask') and len(ops) == 3: s.src |= {('s','vcc')}
                if op.startswith(('v_fmac','v_mac','v_pk_fmac','v_dot2c','v_dot2acc')) or 'op_sel' in rest and op.startswith('v_cvt') or 'sdwa' in op or 'dpp' in op or 'row_' in rest or 'quad_perm' in rest:
                    s.src |= R[0]
        elif s.vmem:
            if 'store' in op or ('atomic' in op and ' sc0' not in rest) or s.lds_dma:
                s.src = set().union(*R) if R else set()
                s.sdata = R[0] if op.startswith('buffer_') else (R[1] if len(R) > 1 else set())
            else:
                s.dst = R[0]; s.src = set().union(*R[1:]) if len(R) > 1 else set()
        elif s.ds:
            if op.startswith(('ds_read','ds_bpermute','ds_permute','ds_swizzle')):
                s.dst = R[0]; s.src = set().union(*R[1:]) if len(R) > 1 else set()
            else:
                s.src = set().union(*R) if R else set()
        elif s.salu:
            if op.startswith(('s_cmp','s_waitcnt','s_nop','s_barrier','s_branch','s_cbranch','s_endpgm','s_setprio','s_sleep','s_bitcmp')):
                s.src = set().union(*R) if R else set()
            else:
                s.dst = R[0] if R else set(); s.src = set().union(*R[1:]) if len(R) > 1 else set()
                if 'saveexec' in op: s.dst |= {('s','exec')}
    def states(s):
        if s.label or s.directive or not s.op: return 0
        if s.op == 's_nop': return int(s.ops[0]) + 1
        return 1
def vg(S): return {r for r in S if r[0] in 'va'}
def sg(S): return {r for r in S if r[0] == 's'}
def need(p, c):
    n = 0
    if p.op == '' or c.op == '': return 0
    pd = p.dst
    if p.valu:
        pv = vg(pd); ps = sg(pd)
        if c.mfma and pv & c.src: n = max(n, 2)
        if ps:
            if c.vmem and ps & c.src: n = max(n, 5)
            if c.valu and ps & (c.src): n = max(n, 4 if 'lane' in c.op and 'first' not in c.op else 2)
        if c.valu and pv & c.src:
            if p.trans and not c.trans: n = max(n, 1)
            if p.trans and c.trans: n = max(n, 1)
            if 'dpp' in c.op or 'row_' in c.mods or 'quad_perm' in c.mods or 'row_bcast' in c.mods: n = max(n, 2)
            if c.op.startswith('v_permlane'): n = max(n, 2)
            if c.op.startswith(('v_readlane','v_readfirstlane')): n = max(n, 1)
            if 'op_sel' in p.mods or 'sdwa' in p.op or 'dst_sel' in p.mods: n = max(n, 1)
        if p.dot and (pv & (c.src | c.dst)):
            if not (c.op == p.op and c.valu and pv & c.R[0] and not (pv & set().union(*c.R[1:3]))): n = max(n, 3)
        if p.trans and (c.vmem or c.ds) and pv & c.src: n = max(n, 1)
    if p.mfma:
        big = 12 if p.passes == 8 else 8
        if c.mfma:
            if pd & (c.A | c.B): n = max(n, big)
            if pd & c.C:
                if not (pd == c.C and p.passes == c.passes): n = max(n, big - 2)
            if pd & c.dst and not (pd & c.C): n = max(n, big)
        elif (c.valu or c.vmem or c.ds):
            if pd & (c.src | c.dst): n = max(n, big)
        if c.valu and (p.C & c.dst): n = max(n, 7 if p.passes == 8 else 3)
    if p.vmem and 'store' in p.op and ('x4' in p.op or 'x3' in p.op):
        if c.valu and vg(p.sdata) & c.dst: n = max(n, 2)
    if p.salu and ('s','m0') in pd:
        if c.lds_dma or 'addtid' in c.op: n = max(n, 1)
    return n
def hazard_pass(lines):
    ins = [Ins(l) for l in lines]
    out = []
    W = 14
    labels = {}
    def required(hist, c):
        dist = 0; extra = 0
        for p in reversed(hist):
            if p.label or p.directive or not p.op: continue
            nd = need(p, c)
            if nd > dist: extra = max(extra, nd - dist)
            dist += p.states()
            if dist >= W: break
        return extra
    for c in ins:
        if c.label: labels[c.text[:-1]] = len(out)
        if c.op:
            ex = required(out[-40:], c)
            while ex > 0:
                k = min(ex, 16); out.append(Ins(f's_nop {k-1}')); ex -= k
            if c.op.startswith(('s_cbranch','s_branch')) and c.ops[0] in labels:
                tgt = labels[c.ops[0]]
                hist = out[-40:] + [c]
                ex = 0; d = 0
                for q in out[tgt:tgt+40]:
                    if not q.op: continue
                    e = required(hist, q)
                    dist = 0; e = 0
                    for p in reversed(hist):
                        if not p.op: continue
                        nd = need(p, q)
                        if nd > dist + d: e = max(e, nd - dist - d)
                        dist += p.states()
                        if dist >= W: break
                    ex = max(ex, e)
                    d += q.states()
                    if d >= W: break
                while ex > 0:
                    k = min(ex, 16); out.append(Ins(f's_nop {k-1}')); ex -= k
        out.append(c)
    return [x.line if x.line else x.text for x in out]
class E:
    gid = 0
    def __init__(s): s.L = []; s.uid = 0
    def __call__(s, line):
        for l in line.split('\n'):
            l = l.strip()
            if l: s.L.append(l)
    def lab(s, base='L'):
        E.gid += 1; return f'{base}_{E.gid}'
    def text(s): return '\n'.join(hazard_pass(s.L)) + '\n'
def srd(e, d, base, nbytes):
    e(f's_mov_b32 s{d}, s{base}\ns_mov_b32 s{d+1}, s{base+1}\ns_mov_b32 s{d+2}, {nbytes}\ns_mov_b32 s{d+3}, 0x00020000')
KD = '''.p2align 6
.amdhsa_kernel {name}
  .amdhsa_next_free_vgpr {vgpr}
  .amdhsa_next_free_sgpr 102
  .amdhsa_accum_offset {acc}
  .amdhsa_group_segment_fixed_size 0
  .amdhsa_kernarg_size 128
  .amdhsa_user_sgpr_count 2
  .amdhsa_user_sgpr_kernarg_segment_ptr 1
  .amdhsa_system_sgpr_workgroup_id_x 1
.end_amdhsa_kernel
'''
def assemble(kernels, header=''):
    s = header
    for k in kernels:
        s += f"; @launch kernel={k['name']} grid=({k['grid']},1,1) block=({k['block']},1,1) lds={k['lds']}\n"
    s += '.amdgcn_target "amdgcn-amd-amdhsa--gfx950"\n.text\n'
    done = set()
    for k in kernels:
        if k['name'] in done: continue
        done.add(k['name'])
        s += f".globl {k['name']}\n.p2align 8\n.type {k['name']},@function\n{k['name']}:\n" + k['e'].text()
    s += 'ALL_END:\n'
    s += '.section .rodata,"a"\n'
    done = set()
    for k in kernels:
        if k['name'] in done: continue
        done.add(k['name'])
        s += KD.format(name=k['name'], vgpr=k['vgpr'], acc=k.get('acc', k['vgpr']))
    return s
PROF = False
def ts(e, i):
    if globals()['PROF'] and i == 0:
        for k in range(72, 96): e(f's_mov_b32 s{k}, 0')
    if globals()['PROF']: e(f's_memtime s[{72+2*i}:{73+2*i}]')
def ts_dump(e, n, wgs=(0, 100), wave_vreg='v0'):
    if not globals()['PROF']: return
    lab = e.lab('TSD')
    e('s_waitcnt lgkmcnt(0)')
    e(f's_load_dwordx2 s[100:101], s[0:1], 112')
    e(f'v_readfirstlane_b32 s98, {wave_vreg}\ns_cmp_ge_u32 s98, 64\ns_cbranch_scc1 {lab}')
    for k, w in enumerate(wgs):
        l2 = e.lab('TSK')
        e(f's_cmp_lg_u32 s99, {w}\ns_cbranch_scc1 {l2}')
        e('s_waitcnt lgkmcnt(0)\ns_mov_b64 exec, 1')
        for i in range(n):
            e(f'v_mov_b32 v1, s{72+2*i}\nv_mov_b32 v2, {(k*16+i)*4}\nglobal_store_dword v2, v1, s[100:101]')
        e('s_waitcnt vmcnt(0)')
        e(f'{l2}:')
    e(f'{lab}:')
```

```python
import sys, os
import asmgen
from asmgen import *
asmgen.PROF = bool(os.environ.get('PROF'))
ks = []
for m in sys.argv[2:]:
    mod = __import__(m.split(':')[0]); ks.append(getattr(mod, 'gen_'+m.split(':')[-1])())
hdr = open('header.txt').read() if os.environ.get('HDR') else ''
open(sys.argv[1], 'w').write(assemble(ks, hdr))
```

```python
import sys, os, re
import asmgen
from asmgen import *
asmgen.PROF = bool(os.environ.get('PROF'))
ks = []
for m in sys.argv[2:]:
    mod = __import__(m.split(':')[0]); ks.append(getattr(mod, 'gen_'+m.split(':')[-1])())
hdr = open('header.txt').read() if os.environ.get('HDR') else ''
txt = assemble(ks, hdr)
sc = dict(x.split(':') for x in os.environ.get('SC', '').split(',') if x)
if sc:
    out = []; cur = None
    for l in txt.split('\n'):
        m = re.match(r'^k(\w)_kernel:', l)
        if m: cur = m.group(1)
        if l.strip().startswith('buffer_store') and cur in sc and 's[20:23]' + '' and not re.search(r'\b(sc1|nt|sc0)\b', l):
            l = l.split(';')[0].rstrip() + ' ' + sc[cur].replace('+', ' ')
        out.append(l)
    txt = '\n'.join(out)
open(sys.argv[1], 'w').write(txt)
```

```python
import re
TRANS = ('v_exp_f32','v_log_f32','v_rcp_f32','v_rsq_f32','v_sqrt_f32','v_sin_f32','v_cos_f32','v_rcp_iflag_f32')
def regs(tok):
    tok = tok.strip()
    if tok.startswith('-'): tok = tok[1:]
    if tok.startswith('|'): tok = tok.strip('|')
    m = re.fullmatch(r'([vsa])\[(\d+):(\d+)\]', tok)
    if m: return {(m.group(1), i) for i in range(int(m.group(2)), int(m.group(3))+1)}
    m = re.fullmatch(r'([vsa])(\d+)', tok)
    if m: return {(m.group(1), int(m.group(2)))}
    if tok in ('vcc','vcc_lo','vcc_hi'): return {('s','vcc')}
    if tok in ('exec','exec_lo','exec_hi'): return {('s','exec')}
    if tok == 'm0': return {('s','m0')}
    return set()
class Ins:
    def __init__(s, line):
        s.line = line
        t = line.split(';')[0].strip()
        s.text = t
        s.label = t.endswith(':')
        s.directive = t.startswith('.')
        s.op = ''
        s.dst = set(); s.src = set(); s.ops = []
        if s.label or s.directive or not t: return
        p = t.split(None, 1)
        s.op = p[0]
        rest = p[1] if len(p) > 1 else ''
        parts = [x.strip() for x in rest.split(',')] if rest else []
        ops = []
        for k, x in enumerate(parts):
            w = x.split()
            if not w: continue
            ops.append(w[0])
        s.ops = ops
        s.mods = rest
        op = s.op
        s.mfma = op.startswith('v_mfma')
        s.valu = op.startswith('v_') and not s.mfma
        s.vmem = op.startswith(('buffer_','global_','flat_'))
        s.ds = op.startswith('ds_')
        s.salu = op.startswith('s_')
        s.trans = any(op.startswith(x) for x in TRANS)
        s.dot = op.startswith('v_dot')
        s.lds_dma = s.vmem and (' lds' in rest or 'load_lds' in op)
        R = [regs(o) for o in ops]
        s.R = R
        if s.mfma:
            s.dst = R[0]; s.A = R[1]; s.B = R[2]; s.C = R[3]; s.src = R[1]|R[2]|R[3]
            s.passes = 8 if '32x32' in op else 4
        elif s.valu:
            if op.startswith('v_cmp'):
                if op.endswith('_e32') or len(ops) == 2: s.dst = {('s','vcc')}; s.src = set().union(*R) if R else set()
                else: s.dst = R[0]; s.src = set().union(*R[1:])
            elif op.startswith(('v_add_co','v_sub_co','v_addc_co','v_subb_co','v_subrev_co')):
                s.dst = R[0]|R[1]; s.src = set().union(*R[2:])
            elif op.startswith('v_permlane') and 'swap' in op:
                s.dst = R[0]|R[1]; s.src = R[0]|R[1]
            else:
                s.dst = R[0]; s.src = set().union(*R[1:]) if len(R) > 1 else set()
                if op.startswith('v_cndmask') and len(ops) == 3: s.src |= {('s','vcc')}
                if op.startswith(('v_fmac','v_mac','v_pk_fmac','v_dot2c','v_dot2acc')) or 'op_sel' in rest and op.startswith('v_cvt') or 'sdwa' in op or 'dpp' in op or 'row_' in rest or 'quad_perm' in rest:
                    s.src |= R[0]
        elif s.vmem:
            if 'store' in op or ('atomic' in op and ' sc0' not in rest) or s.lds_dma:
                s.src = set().union(*R) if R else set()
                s.sdata = R[0] if op.startswith('buffer_') else (R[1] if len(R) > 1 else set())
            else:
                s.dst = R[0]; s.src = set().union(*R[1:]) if len(R) > 1 else set()
        elif s.ds:
            if op.startswith(('ds_read','ds_bpermute','ds_permute','ds_swizzle')):
                s.dst = R[0]; s.src = set().union(*R[1:]) if len(R) > 1 else set()
            else:
                s.src = set().union(*R) if R else set()
        elif s.salu:
            if op.startswith(('s_cmp','s_waitcnt','s_nop','s_barrier','s_branch','s_cbranch','s_endpgm','s_setprio','s_sleep','s_bitcmp')):
                s.src = set().union(*R) if R else set()
            else:
                s.dst = R[0] if R else set(); s.src = set().union(*R[1:]) if len(R) > 1 else set()
                if 'saveexec' in op: s.dst |= {('s','exec')}
    def states(s):
        if s.label or s.directive or not s.op: return 0
        if s.op == 's_nop': return int(s.ops[0]) + 1
        return 1
def vg(S): return {r for r in S if r[0] in 'va'}
def sg(S): return {r for r in S if r[0] == 's'}
def need(p, c):
    n = 0
    if p.op == '' or c.op == '': return 0
    pd = p.dst
    if p.valu:
        pv = vg(pd); ps = sg(pd)
        if c.mfma and pv & c.src: n = max(n, 2)
        if ps:
            if c.vmem and ps & c.src: n = max(n, 5)
            if c.valu and ps & (c.src): n = max(n, 4 if 'lane' in c.op and 'first' not in c.op else 2)
        if c.valu and pv & c.src:
            if p.trans and not c.trans: n = max(n, 1)
            if p.trans and c.trans: n = max(n, 1)
            if 'dpp' in c.op or 'row_' in c.mods or 'quad_perm' in c.mods or 'row_bcast' in c.mods: n = max(n, 2)
            if c.op.startswith('v_permlane'): n = max(n, 2)
            if c.op.startswith(('v_readlane','v_readfirstlane')): n = max(n, 1)
            if 'op_sel' in p.mods or 'sdwa' in p.op or 'dst_sel' in p.mods: n = max(n, 1)
        if p.dot and (pv & (c.src | c.dst)):
            if not (c.op == p.op and c.valu and pv & c.R[0] and not (pv & set().union(*c.R[1:3]))): n = max(n, 3)
        if p.trans and (c.vmem or c.ds) and pv & c.src: n = max(n, 1)
    if p.mfma:
        big = 12 if p.passes == 8 else 8
        if c.mfma:
            if pd & (c.A | c.B): n = max(n, big)
            if pd & c.C:
                if not (pd == c.C and p.passes == c.passes): n = max(n, big - 2)
            if pd & c.dst and not (pd & c.C): n = max(n, big)
        elif (c.valu or c.vmem or c.ds):
            if pd & (c.src | c.dst): n = max(n, big)
        if c.valu and (p.C & c.dst): n = max(n, 7 if p.passes == 8 else 3)
    if p.vmem and 'store' in p.op and ('x4' in p.op or 'x3' in p.op):
        if c.valu and vg(p.sdata) & c.dst: n = max(n, 2)
    if p.salu and ('s','m0') in pd:
        if c.lds_dma or 'addtid' in c.op: n = max(n, 1)
    return n
def hazard_pass(lines):
    ins = [Ins(l) for l in lines]
    out = []
    W = 14
    labels = {}
    def required(hist, c):
        dist = 0; extra = 0
        for p in reversed(hist):
            if p.label or p.directive or not p.op: continue
            nd = need(p, c)
            if nd > dist: extra = max(extra, nd - dist)
            dist += p.states()
            if dist >= W: break
        return extra
    for c in ins:
        if c.label: labels[c.text[:-1]] = len(out)
        if c.op:
            ex = required(out[-40:], c)
            while ex > 0:
                k = min(ex, 16); out.append(Ins(f's_nop {k-1}')); ex -= k
            if c.op.startswith(('s_cbranch','s_branch')) and c.ops[0] in labels:
                tgt = labels[c.ops[0]]
                hist = out[-40:] + [c]
                ex = 0; d = 0
                for q in out[tgt:tgt+40]:
                    if not q.op: continue
                    e = required(hist, q)
                    dist = 0; e = 0
                    for p in reversed(hist):
                        if not p.op: continue
                        nd = need(p, q)
                        if nd > dist + d: e = max(e, nd - dist - d)
                        dist += p.states()
                        if dist >= W: break
                    ex = max(ex, e)
                    d += q.states()
                    if d >= W: break
                while ex > 0:
                    k = min(ex, 16); out.append(Ins(f's_nop {k-1}')); ex -= k
        out.append(c)
    return [x.line if x.line else x.text for x in out]
class E:
    gid = 0
    def __init__(s): s.L = []; s.uid = 0
    def __call__(s, line):
        for l in line.split('\n'):
            l = l.strip()
            if l: s.L.append(l)
    def lab(s, base='L'):
        E.gid += 1; return f'{base}_{E.gid}'
    def text(s): return '\n'.join(hazard_pass(s.L)) + '\n'
def srd(e, d, base, nbytes):
    e(f's_mov_b32 s{d}, s{base}\ns_mov_b32 s{d+1}, s{base+1}\ns_mov_b32 s{d+2}, {nbytes}\ns_mov_b32 s{d+3}, 0x00020000')
KD = '''.p2align 6
.amdhsa_kernel {name}
  .amdhsa_next_free_vgpr {vgpr}
  .amdhsa_next_free_sgpr 102
  .amdhsa_accum_offset {acc}
  .amdhsa_group_segment_fixed_size 0
  .amdhsa_kernarg_size 128
  .amdhsa_user_sgpr_count 2
  .amdhsa_user_sgpr_kernarg_segment_ptr 1
  .amdhsa_system_sgpr_workgroup_id_x 1
.end_amdhsa_kernel
'''
def assemble(kernels, header=''):
    s = header
    for k in kernels:
        s += f"; @launch kernel={k['name']} grid=({k['grid']},1,1) block=({k['block']},1,1) lds={k['lds']}\n"
    s += '.amdgcn_target "amdgcn-amd-amdhsa--gfx950"\n.text\n'
    done = set()
    for k in kernels:
        if k['name'] in done: continue
        done.add(k['name'])
        import os
        pro = ''
        if os.environ.get('SPF') and k['name'][1] in os.environ['SPF']:
            n = k['name']; fr = {'a': 250, 'b': 250, 'd': 250, 'e': 207}[n[1]]
            pro = (f's_getpc_b64 s[4:5]\ns_mov_b32 s6, {n}_end-{n}-64\nv_lshlrev_b32 v1, 7, v0\nv_min_u32 v1, s6, v1\n'
                   f'v_mov_b32 v3, s5\nv_add_co_u32 v2, vcc, s4, v1\ns_nop 1\nv_addc_co_u32 v3, vcc, 0, v3, vcc\n'
                   f'global_load_dword v{fr}, v[2:3], off\n')
        s += f".globl {k['name']}\n.p2align 8\n.type {k['name']},@function\n{k['name']}:\n" + pro + k['e'].text()
        s += f"{k['name']}_end:\n"
    s += 'ALL_END:\n'
    s += '.section .rodata,"a"\n'
    done = set()
    for k in kernels:
        if k['name'] in done: continue
        done.add(k['name'])
        s += KD.format(name=k['name'], vgpr=k['vgpr'], acc=k.get('acc', k['vgpr']))
    return s
PROF = False
def ts(e, i):
    if globals()['PROF'] and i == 0:
        for k in range(72, 96): e(f's_mov_b32 s{k}, 0')
    if globals()['PROF']: e(f's_memtime s[{72+2*i}:{73+2*i}]')
def ts_dump(e, n, wgs=(0, 100), wave_vreg='v0'):
    if not globals()['PROF']: return
    lab = e.lab('TSD')
    e('s_waitcnt lgkmcnt(0)')
    e(f's_load_dwordx2 s[100:101], s[0:1], 112')
    e(f'v_readfirstlane_b32 s98, {wave_vreg}\ns_cmp_ge_u32 s98, 64\ns_cbranch_scc1 {lab}')
    for k, w in enumerate(wgs):
        l2 = e.lab('TSK')
        e(f's_cmp_lg_u32 s99, {w}\ns_cbranch_scc1 {l2}')
        e('s_waitcnt lgkmcnt(0)\ns_mov_b64 exec, 1')
        for i in range(n):
            e(f'v_mov_b32 v1, s{72+2*i}\nv_mov_b32 v2, {(k*16+i)*4}\nglobal_store_dword v2, v1, s[100:101]')
        e('s_waitcnt vmcnt(0)')
        e(f'{l2}:')
    e(f'{lab}:')
```
